```python
import torch

def _softmax(x, axis=-1):
    return torch.softmax(x, dim=axis)
def _gelu(x):
    return torch.nn.functional.gelu(x, approximate="tanh")
def _silu(x):
    return torch.nn.functional.silu(x)
def _sigmoid(x):
    return torch.sigmoid(x)
def _layernorm(x, axis=-1, eps=1e-5):
    m = x.mean(dim=axis, keepdim=True)
    v = x.var(dim=axis, keepdim=True, unbiased=False)
    return (x - m) / torch.sqrt(v + eps)
def _scatter_add(tgt, idx, src, axis=0):
    return tgt.clone().index_add_(axis, idx, src)
def _segment_sum(src, seg, n):
    out = torch.zeros((n,) + src.shape[1:], dtype=src.dtype)
    return out.index_add_(0, seg, src)
def _pad(x, pw):
    flat = tuple(v for pair in reversed(pw) for v in pair)
    return torch.nn.functional.pad(x, flat)

kernel_name = 'gated_mix__mha_block_cached__mixer_token_mlp__decode'

def setup_inputs():

    _w = (lambda a: (lambda t: t.to(torch.bfloat16) if t.is_floating_point() else t)(torch.as_tensor(a)))
    def _A_setup():
        B, Sq, D = 8, 1, 512
        H, Sk, Dh = 32, 4096, 128
        return {
            "x": _w((lambda *s: torch.randn(*s, dtype=torch.bfloat16) * 0.05)(B, Sq, D)),
            "k_cache": _w((lambda *s: torch.randn(*s, dtype=torch.bfloat16) * 6.4)(B, H, Sk, Dh)),
            "v_cache": _w((lambda *s: torch.randn(*s, dtype=torch.bfloat16) * 1.6)(B, H, Sk, Dh)),
            "wq": _w((lambda *s: torch.randn(*s, dtype=torch.bfloat16) * 6.4)(D, H * Dh) * (D ** -0.5)),
            "wo": _w((lambda *s: torch.randn(*s, dtype=torch.bfloat16) * 1.6)(H * Dh, D) * ((H * Dh) ** -0.5)),
        }
    _A_in = _A_setup()

    def _B_setup():
        B, S, D, F = 8, 1, 512, 1792
        return {
            "x": _w((lambda *s: torch.randn(*s, dtype=torch.bfloat16) * 0.05)(B, S, D)),
            "w1": _w((lambda *s: torch.randn(*s, dtype=torch.bfloat16) * 3.2)(S, F) * (S ** -0.5)),
            "b1": _w((lambda *s: torch.randn(*s, dtype=torch.bfloat16) * 3.2)(F) * 0.02),
            "w2": _w((lambda *s: torch.randn(*s, dtype=torch.bfloat16) * 0.1)(F, S) * (F ** -0.5)),
            "b2": _w((lambda *s: torch.randn(*s, dtype=torch.bfloat16) * 0.1)(S) * 0.02),
        }
    _B_in = _B_setup()

    return {
        "A_x": _A_in["x"],
        "A_k_cache": _A_in["k_cache"],
        "A_v_cache": _A_in["v_cache"],
        "A_wq": _A_in["wq"],
        "A_wo": _A_in["wo"],
        "B_x": _B_in["x"],
        "B_w1": _B_in["w1"],
        "B_b1": _B_in["b1"],
        "B_w2": _B_in["w2"],
        "B_b2": _B_in["b2"],
        "gate_w": _w((lambda *s: torch.randn(*s, dtype=torch.bfloat16) * 0.05)(512) * 16.0),
    }

def reference(A_x, A_k_cache, A_v_cache, A_wq, A_wo, B_x, B_w1, B_b1, B_w2, B_b2, gate_w):
    def _A_ref(x, k_cache, v_cache, wq, wo):
        B, Sq, D = x.shape
        H, Dh = 32, 128
        q = (lambda x, *d: x.permute(*d))((x @ wq).reshape(B, Sq, H, Dh), 0, 2, 1, 3)
        scores = torch.einsum("bhqd,bhkd->bhqk", q, k_cache) * (Dh ** -0.5)
        p = _softmax(scores, axis=-1)
        o = torch.einsum("bhqk,bhkd->bhqd", p, v_cache)
        return (lambda x, *d: x.permute(*d))(o, 0, 2, 1, 3).reshape(B, Sq, H * Dh) @ wo

    def _B_ref(x, w1, b1, w2, b2):
        B, S, D = x.shape
        h = _layernorm(x, axis=-1)
        u = torch.einsum("bsd,sf->bdf", h, w1) + b1
        u = _gelu(u)
        y = torch.einsum("bdf,fs->bds", u, w2) + b2
        return (lambda x, *d: x.permute(*d))(y, 0, 2, 1)

    x = A_x
    g = _sigmoid((x * gate_w).sum(-1, keepdims=True))
    a = _A_ref(x, A_k_cache, A_v_cache, A_wq, A_wo)
    b = _B_ref(x, B_w1, B_b1, B_w2, B_b2)
    return g * a + (1 - g) * b
```

```python
import re

TRANS = ("v_exp_f32", "v_log_f32", "v_rcp_f32", "v_rsq_f32", "v_sqrt_f32", "v_sin_f32", "v_cos_f32")

def regs_of(tok):
    tok = tok.strip()
    neg = tok.lstrip("-|").rstrip("|")
    if neg.startswith("abs("): neg = neg[4:-1]
    m = re.fullmatch(r"([vsa])(\d+)", neg)
    if m: return {(m.group(1), int(m.group(2)))}
    m = re.fullmatch(r"([vsa])\[(\d+):(\d+)\]", neg)
    if m: return {(m.group(1), i) for i in range(int(m.group(2)), int(m.group(3)) + 1)}
    if neg == "vcc": return {("s", 106), ("s", 107)}
    if neg == "vcc_lo": return {("s", 106)}
    if neg == "vcc_hi": return {("s", 107)}
    if neg == "exec": return {("s", 126), ("s", 127)}
    if neg == "m0": return {("s", 124)}
    return set()

class Ins:
    def __init__(self, text):
        self.text = text
        t = text.split(";")[0].strip()
        self.label = None; self.op = ""; self.ops = []; self.mods = ""
        if t.endswith(":"):
            self.label = t[:-1]; return
        if not t or t.startswith("."):
            return
        parts = t.split(None, 1)
        self.op = parts[0]
        rest = parts[1] if len(parts) > 1 else ""
        toks, depth, cur = [], 0, ""
        for ch in rest:
            if ch in "[(": depth += 1
            if ch in "])": depth -= 1
            if ch == "," and depth == 0:
                toks.append(cur.strip()); cur = ""
            else: cur += ch
        if cur.strip(): toks.append(cur.strip())
        if toks:
            last = toks[-1].split(None, 1)
            toks[-1] = last[0]
            self.mods = last[1] if len(last) > 1 else ""
        self.ops = toks
        self.classify()

    def classify(self):
        op = self.op; ops = self.ops
        base = re.sub(r"_(e32|e64|dpp|sdwa)$", "", op)
        self.base = base
        self.valu = op.startswith("v_") and not op.startswith("v_mfma")
        self.mfma = op.startswith("v_mfma")
        self.vmem = op.startswith(("buffer_", "global_", "flat_"))
        self.ds = op.startswith("ds_")
        self.salu = op.startswith("s_")
        self.dpp = op.endswith("_dpp") or any(k in self.mods for k in ("row_", "quad_perm", "wave_"))
        self.trans = base in TRANS
        self.permlane = "permlane" in op
        self.readlane = base in ("v_readlane_b32", "v_readfirstlane_b32")
        self.writelane = base == "v_writelane_b32"
        self.dst = set(); self.src = set()
        R = [regs_of(o) for o in ops]
        allr = set().union(*R) if R else set()
        if self.mfma:
            self.dst = R[0]; self.srcA = R[1]; self.srcB = R[2]; self.srcC = R[3]
            self.src = R[1] | R[2] | R[3]
        elif self.valu:
            if base.startswith("v_cmp"):
                self.dst = R[0]; self.src = set().union(*R[1:])
                if base.startswith("v_cmpx"): self.dst |= regs_of("exec")
            elif self.permlane and "swap" in op:
                self.dst = R[0] | R[1]; self.src = R[0] | R[1]
            elif base in ("v_add_co_u32", "v_sub_co_u32", "v_addc_co_u32", "v_subb_co_u32", "v_subrev_co_u32"):
                self.dst = R[0] | R[1]; self.src = set().union(*R[2:])
            elif base in ("v_fmac_f32", "v_dot2c_f32_bf16", "v_writelane_b32", "v_pk_fmac_f16"):
                self.dst = R[0]; self.src = allr
            else:
                self.dst = R[0] if R else set(); self.src = set().union(*R[1:]) if len(R) > 1 else set()
                if base == "v_cndmask_b32" and len(ops) == 3: self.src |= regs_of("vcc")
                if self.dpp and ("bank_mask" in self.mods or "row_mask" in self.mods): pass
        elif self.vmem:
            lds = re.search(r"\blds\b", self.mods) is not None or "_lds_" in op
            self.ldsdma = lds
            if "load" in op and not lds:
                self.dst = R[0]; self.src = set().union(*R[1:])
            elif "atomic" in op and "sc0" in self.mods:
                if op.startswith("global"):
                    self.dst = R[0]; self.src = set().union(*R[1:])
                else:
                    self.dst = R[0]; self.src = allr
            elif op in ("buffer_wbl2", "buffer_inv"):
                pass
            else:
                self.src = allr
            self.wide_store = ("store" in op) and ("x3" in op or "x4" in op)
            self.store_data = set()
            if self.wide_store:
                self.store_data = R[0] if op.startswith("buffer") else R[1]
        elif self.ds:
            if op.startswith(("ds_read", "ds_bpermute", "ds_permute", "ds_swizzle")) or "_rtn_" in op:
                self.dst = R[0]; self.src = set().union(*R[1:]) if len(R) > 1 else set()
            else:
                self.src = allr
        elif self.salu:
            if base.startswith(("s_cmp", "s_cbranch", "s_branch", "s_waitcnt", "s_nop", "s_barrier", "s_endpgm", "s_sleep", "s_setprio", "s_bitcmp")):
                self.src = allr
            elif base.startswith("s_load") or base in ("s_memtime", "s_memrealtime"):
                self.dst = R[0]; self.src = set().union(*R[1:]) if len(R) > 1 else set()
            else:
                self.dst = R[0] if R else set(); self.src = set().union(*R[1:]) if len(R) > 1 else set()
                if "saveexec" in base: self.dst |= regs_of("exec"); self.src |= regs_of("exec")
                if base == "s_movrels_b32": self.src |= regs_of("m0")

    def states(self):
        if self.op == "s_nop": return int(self.ops[0], 0) + 1
        return 1 if self.op else 0

def need(prod, cons):
    n = 0
    if not prod.op or not cons.op: return 0
    pv = {r for r in prod.dst if r[0] in "va"}
    ps = {r for r in prod.dst if r[0] == "s"}
    cv = {r for r in cons.src if r[0] in "va"}
    cs = {r for r in cons.src if r[0] == "s"}
    if prod.valu:
        if pv & cv:
            if cons.dpp: n = max(n, 2)
            if cons.readlane: n = max(n, 1)
            if cons.permlane: n = max(n, 2)
            if cons.mfma: n = max(n, 2)
            if prod.trans and cons.valu and not cons.trans: n = max(n, 1)
            if prod.trans and (cons.vmem or cons.ds): n = max(n, 1)
        if ps & cs:
            if cons.valu or cons.mfma:
                n = max(n, 2)
                if (cons.readlane or cons.writelane): n = max(n, 4)
            if cons.vmem: n = max(n, 5)
            if cons.salu: n = max(n, 4 if not cons.op.startswith("s_cbranch") else 0)
        if (("s", 126) in ps):
            if cons.dpp: n = max(n, 5)
            if cons.mfma or cons.readlane or cons.permlane: n = max(n, 4)
        if (("s", 106) in ps) and cons.op in ("s_cbranch_vccz", "s_cbranch_vccnz"): n = max(n, 5)
    if prod.valu and prod.base.startswith("v_dot"):
        touched = (pv & cv) or (pv & {r for r in cons.dst if r[0] in "va"})
        if touched:
            if cons.base == prod.base:
                ab = set().union(*[regs_of(o) for o in cons.ops[1:3]])
                if pv & ab: n = max(n, 3)
            else:
                n = max(n, 3)
    if prod.mfma:
        D = prod.dst
        if cons.mfma:
            if D & (cons.srcA | cons.srcB): n = max(n, 8)
            if D & cons.srcC and cons.srcC != D: n = max(n, 6)
        else:
            if (D & cv) or (D & {r for r in cons.dst if r[0] in "va"}): n = max(n, 8)
        if cons.valu and (prod.srcC & {r for r in cons.dst}): n = max(n, 3)
    if prod.vmem and getattr(prod, "wide_store", False):
        if (cons.valu or cons.mfma) and (prod.store_data & cons.dst): n = max(n, 2)
        elif (prod.store_data & cons.dst): n = max(n, 1)
    if prod.salu and ("s", 124) in ps:
        if (cons.vmem and getattr(cons, "ldsdma", False)) or cons.base == "s_movrels_b32" or cons.base == "s_movreld_b32": n = max(n, 1)
    return n

class Asm:
    def __init__(self):
        self.lines = []
    def __call__(self, text):
        for t in text.split("\n"):
            t = t.strip()
            if t: self.lines.append(t)
    def raw(self, text): self.lines.append(text)

    def finalize(self, verbose=False):
        ins = [Ins(t) for t in self.lines]
        changed = True; inserted = 0
        MAXS = 12
        while changed:
            changed = False
            labels = {x.label: i for i, x in enumerate(ins) if x.label}
            preds = {i: [] for i in range(len(ins))}
            for i, x in enumerate(ins):
                if x.op.startswith(("s_cbranch", "s_branch")):
                    tgt = x.ops[0]
                    if tgt in labels: preds[labels[tgt]].append(i)
                if i + 1 < len(ins) and x.op not in ("s_branch", "s_endpgm", "s_setpc_b64"):
                    preds[i + 1].append(i)
            for i, c in enumerate(ins):
                if not c.op: continue
                worst = 0; why = None
                stack = [(p, 0) for p in preds[i]]
                seen = {}
                while stack:
                    j, dist = stack.pop()
                    if dist >= MAXS: continue
                    if j in seen and seen[j] <= dist: continue
                    seen[j] = dist
                    p = ins[j]
                    if p.op:
                        n = need(p, c)
                        if n - dist > worst: worst = n - dist; why = p
                    nd = dist + p.states()
                    for q in preds[j]: stack.append((q, nd))
                if worst > 0:
                    if verbose: print(f"; +{worst} wait states before '{c.text}' (producer '{why.text}')")
                    ins.insert(i, Ins(f"s_nop {worst-1}"))
                    inserted += 1
                    changed = True
                    break
        return "\n".join(x.text for x in ins) + "\n", inserted
```

```python
import math, struct, sys
from asmlib import Asm

KNAME = "gated_mix__mha_block_cached__mixer_token_mlp__decode_kernel"

def f32bits(x): return struct.unpack("<I", struct.pack("<f", x))[0]

WO_BASE = 0
S_BASE  = 131072
QP_BASE = 147456
SC_BASE = 151552
ML_BASE = 155648
LDS_BYTES = ML_BASE + 128
WS_Y  = 0
WS_T2 = 0x80000
WS_G  = 0x84000
WS_STAMP = 0x100000

HEADER = open("cdna_kernels/" + KNAME[:-7] + ".s.ref").read().split("; Override launch")[0]

def gen(D=4, kv_pol="nt", wq_pol="nt", wo_pol="nt", stamps=False, prio=2, dump=False):
    a = Asm()
    W = 8
    RING = 40
    WREG = 72
    XREG = 136
    assert RING + 4 * D <= WREG
    def slot(j): return f"v[{RING+4*j}:{RING+4*j+3}]"
    def pol(p): return (" " + p) if p else ""
    nstamp = [0]
    def stamp():
        if stamps:
            a(f"s_memrealtime s[{80+2*nstamp[0]}:{81+2*nstamp[0]}]")
            nstamp[0] += 1

    def wave_reduce(op, v, tmp):
        for r in (8, 4, 2, 1):
            a(f"{op}_dpp {v}, {v}, {v} row_ror:{r} row_mask:0xf bank_mask:0xf")
        a(f"v_mov_b32 {tmp}, {v}")
        a(f"v_permlane16_swap_b32 {v}, {tmp}")
        a(f"{op} {v}, {v}, {tmp}")
        a(f"v_mov_b32 {tmp}, {v}")
        a(f"v_permlane32_swap_b32 {v}, {tmp}")
        a(f"{op} {v}, {v}, {tmp}")

    def round_pair(x, y, pk, smask):
        a(f"v_cvt_pk_bf16_f32 {pk}, {x}, {y}")
        a(f"v_lshlrev_b32 {x}, 16, {pk}")
        a(f"v_and_b32 {y}, {smask}, {pk}")

    def round_one(x, tmp):
        a(f"v_cvt_pk_bf16_f32 {tmp}, {x}, {x}")
        a(f"v_lshlrev_b32 {x}, 16, {tmp}")

    a(f"{KNAME}:")
    a("s_cmp_ge_u32 s2, 0x100")
    a("s_cbranch_scc1 L_end")
    a("s_load_dwordx16 s[16:31], s[0:1], 0")
    a("s_load_dwordx8 s[32:39], s[0:1], 64")
    a("s_load_dwordx4 s[40:43], s[0:1], 96")
    stamp()
    a("v_lshrrev_b32 v3, 6, v0")
    a("v_and_b32 v1, 63, v0")
    a("v_readfirstlane_b32 s3, v3")
    a("v_lshlrev_b32 v2, 4, v1")
    a("v_and_b32 v4, 15, v1")
    a("v_lshrrev_b32 v5, 4, v1")
    a("s_and_b32 s4, s2, 31")
    a("s_lshr_b32 s5, s2, 5")
    a("s_mov_b32 s66, 0xffff0000")
    a(f"s_mov_b32 s65, {f32bits(math.log2(math.e)):#x}")
    a("s_cmp_eq_u32 s3, 8")
    a("s_cbranch_scc1 L_helper")
    if prio: a(f"s_setprio {prio}")
    a("v_and_b32 v6, 1, v4")
    a("v_lshlrev_b32 v6, 4, v6")
    a("v_mov_b32 v7, 0xffff")
    a("v_lshlrev_b32 v6, v6, v7")
    a("v_bfe_u32 v7, v4, 1, 2")
    for r in range(4):
        a(f"v_cmp_eq_u32 vcc, {r}, v7")
        a(f"v_cndmask_b32 v{8+r}, 0, v6, vcc")
    a("v_lshlrev_b32 v25, 17, v5")
    a("v_lshl_add_u32 v25, v4, 4, v25")
    a("v_lshlrev_b32 v26, 5, v5")
    a("v_and_b32 v27, 1, v5")
    a("v_lshlrev_b32 v27, 4, v27")
    a("v_lshl_add_u32 v27, v4, 5, v27")
    a("s_lshl_b32 s6, s2, 20")
    a("s_lshr_b32 s7, s2, 12")
    a("s_lshl_b32 s8, s5, 10")
    a("s_lshl_b32 s9, s3, 7")
    a("s_add_u32 s8, s8, s9")
    a("s_lshl_b32 s62, s3, 19")
    a("s_lshl_b32 s9, s4, 8")
    a("s_add_u32 s62, s62, s9")
    a("s_lshl_b32 s60, s3, 12")
    a("s_mov_b32 s46, 0x100000")
    a("s_mov_b32 s47, 0x20000")
    a("s_mov_b32 s50, 0x100000")
    a("s_mov_b32 s51, 0x20000")
    a("s_mov_b32 s54, 0x400000")
    a("s_mov_b32 s55, 0x20000")
    a("s_mov_b32 s58, 0x400000")
    a("s_mov_b32 s59, 0x20000")
    a("s_waitcnt lgkmcnt(0)")
    a("s_add_u32 s16, s16, s8")
    a("s_addc_u32 s17, s17, 0")
    a("s_mov_b32 s52, s22")
    a("s_mov_b32 s53, s23")
    a(f"global_load_dwordx4 v[{XREG}:{XREG+3}], v26, s[16:17]")
    a(f"global_load_dwordx4 v[{XREG+4}:{XREG+7}], v26, s[16:17] offset:16")
    for t in range(16):
        a(f"buffer_load_dwordx4 v[{WREG+4*t}:{WREG+4*t+3}], v25, s[52:55], s62 offen{pol(wq_pol)}")
        if t < 15: a("s_add_u32 s62, s62, 0x2000")
    a("s_add_u32 s44, s18, s6")
    a("s_addc_u32 s45, s19, s7")
    a("s_add_u32 s48, s20, s6")
    a("s_addc_u32 s49, s21, s7")
    a("s_mov_b32 s56, s24")
    a("s_mov_b32 s57, s25")
    KS, VS = "s[44:47]", "s[48:51]"

    def issue(srd, n):
        t = n & 3
        a(f"buffer_load_dwordx4 {slot(n % D)}, v2, {srd}, s60 offen offset:{t*1024}{pol(kv_pol)}")
        if t == 3: a("s_add_u32 s60, s60, 0x8000")

    for n in range(D): issue(KS, n)

    a("s_mov_b32 s8, 0x01000100")
    a("s_mov_b32 s9, 0x03020302")
    a(f"s_waitcnt vmcnt({16 + D})")
    for t in range(16):
        xr = f"v{XREG + (t >> 1)}"
        a(f"v_perm_b32 v3, {xr}, {xr}, s{8 + (t & 1)}")
        for r in range(4): a(f"v_and_b32 v{32+r}, v3, v{8+r}")
        a(f"s_waitcnt vmcnt({15 - t + D})")
        c = "0" if t == 0 else "v[36:39]"
        a(f"v_mfma_f32_16x16x32_bf16 v[36:39], v[32:35], v[{WREG+4*t}:{WREG+4*t+3}], {c}")
    a("s_lshl_b32 s6, s3, 9")
    a(f"s_add_u32 s7, s6, {QP_BASE}")
    a("v_add_u32 v26, s7, v27")
    a("ds_write_b128 v26, v[36:39]")
    a("v_lshlrev_b32 v3, 3, v1")
    a(f"v_add_u32 v0, {QP_BASE}, v3")
    a("s_waitcnt lgkmcnt(0)")
    a("s_barrier")
    stamp()
    for w in range(8): a(f"ds_read_b64 v[{WREG+2*w}:{WREG+2*w+1}], v0 offset:{w*512}")
    a(f"s_add_u32 s10, s6, {SC_BASE}")
    a("v_lshl_add_u32 v3, v1, 2, s10")
    a("v_lshl_add_u32 v6, v4, 4, s10")
    a("s_waitcnt lgkmcnt(0)")
    def sum8(base, o0, o1):
        for h in range(2):
            r = lambda i: f"v{base + 2*i + h}"
            a(f"v_add_f32 {r(0)}, {r(0)}, {r(1)}")
            a(f"v_add_f32 {r(2)}, {r(2)}, {r(3)}")
            a(f"v_add_f32 {r(4)}, {r(4)}, {r(5)}")
            a(f"v_add_f32 {r(6)}, {r(6)}, {r(7)}")
            a(f"v_add_f32 {r(0)}, {r(0)}, {r(2)}")
            a(f"v_add_f32 {r(4)}, {r(4)}, {r(6)}")
            a(f"v_add_f32 {(o0, o1)[h]}, {r(0)}, {r(4)}")
    sum8(WREG, "v16", "v17")
    a("v_cvt_pk_bf16_f32 v7, v16, v17")
    a("ds_write_b32 v3, v7")
    a("s_waitcnt lgkmcnt(0)")
    a("ds_read_b128 v[12:15], v6")
    a("s_lshl_b32 s11, s3, 11")
    a(f"s_add_u32 s11, s11, {S_BASE}")
    a("v_lshrrev_b32 v3, 2, v4")
    a("v_lshl_add_u32 v3, v5, 2, v3")
    a("v_lshl_add_u32 v23, v3, 2, s11")
    a("v_lshl_add_u32 v24, v5, 4, s11")
    a("s_waitcnt lgkmcnt(0)")
    if dump:
        pass
    stamp()

    body = D * 4 // math.gcd(D, 4)
    def k_step(n, nxt, tile_in_body):
        t = n & 3
        r = RING + 4 * (n % D)
        a(f"s_waitcnt vmcnt({D-1})")
        a(f"v_dot2_f32_bf16 v{16+t}, v{r}, v12, 0")
        a(f"v_dot2_f32_bf16 v{16+t}, v{r+1}, v13, v{16+t}")
        a(f"v_dot2_f32_bf16 v{16+t}, v{r+2}, v14, v{16+t}")
        a(f"v_dot2_f32_bf16 v{16+t}, v{r+3}, v15, v{16+t}")
        nxt()
        if t == 3:
            a("v_add_f32_dpp v20, v16, v16 row_ror:8 row_mask:0xf bank_mask:0x3")
            a("v_add_f32_dpp v21, v17, v17 row_ror:8 row_mask:0xf bank_mask:0x3")
            a("v_add_f32_dpp v20, v18, v18 row_ror:8 row_mask:0xf bank_mask:0xc")
            a("v_add_f32_dpp v21, v19, v19 row_ror:8 row_mask:0xf bank_mask:0xc")
            a("v_add_f32_dpp v22, v20, v20 row_ror:12 row_mask:0xf bank_mask:0x5")
            a("v_add_f32_dpp v22, v21, v21 row_ror:4 row_mask:0xf bank_mask:0xa")
            a("v_add_f32_dpp v22, v22, v22 quad_perm:[1,0,3,2] row_mask:0xf bank_mask:0xf")
            a("v_add_f32_dpp v22, v22, v22 quad_perm:[2,3,0,1] row_mask:0xf bank_mask:0xf")
            a(f"ds_write_b32 v23, v22 offset:{tile_in_body*64}")
    NL = 128
    nfull = (NL - D) // body
    a(f"s_mov_b32 s61, {nfull}")
    a("L_kloop:")
    for n in range(body):
        k_step(n, (lambda n=n: issue(KS, n + D)), n >> 2)
    a(f"v_add_u32 v23, {64 * (body // 4)}, v23")
    a("s_sub_u32 s61, s61, 1")
    a("s_cmp_lg_u32 s61, 0")
    a("s_cbranch_scc1 L_kloop")
    n0 = nfull * body
    def k_next(n):
        m = n + D
        if m < NL: issue(KS, m)
        else:
            if m == NL: a("s_lshl_b32 s60, s3, 12")
            t = (m - NL) & 3
            a(f"buffer_load_dwordx4 {slot(n % D)}, v2, {VS}, s60 offen offset:{t*1024}{pol(kv_pol)}")
            if t == 3: a("s_add_u32 s60, s60, 0x8000")
    for n in range(n0, NL):
        k_step(n, (lambda n=n: k_next(n)), (n - n0) >> 2)
    stamp()

    E = WREG
    a(f"s_mov_b32 s64, {f32bits(128 ** -0.5):#x}")
    a("v_lshl_add_u32 v3, v1, 5, s11")
    a("s_waitcnt lgkmcnt(0)")
    a(f"ds_read_b128 v[{E}:{E+3}], v3")
    a(f"ds_read_b128 v[{E+4}:{E+7}], v3 offset:16")
    a("s_lshl_b32 s6, s3, 2")
    a(f"s_add_u32 s6, s6, {ML_BASE}")
    a("v_mov_b32 v6, s6")
    a(f"v_mov_b32 v7, {ML_BASE}")
    a("s_waitcnt lgkmcnt(0)")
    for p in range(4): round_pair(f"v{E+2*p}", f"v{E+2*p+1}", f"v{16+p}", "s66")
    for i in range(8): a(f"v_mul_f32 v{E+i}, s64, v{E+i}")
    for p in range(4): round_pair(f"v{E+2*p}", f"v{E+2*p+1}", f"v{16+p}", "s66")
    a(f"v_max3_f32 v20, v{E}, v{E+1}, v{E+2}")
    a(f"v_max3_f32 v21, v{E+3}, v{E+4}, v{E+5}")
    a(f"v_max3_f32 v20, v20, v{E+6}, v{E+7}")
    a("v_max_f32 v20, v20, v21")
    wave_reduce("v_max_f32", "v20", "v21")
    a("s_mov_b64 exec, 1")
    a("ds_write_b32 v6, v20")
    a("s_mov_b64 exec, -1")
    a("s_waitcnt lgkmcnt(0)")
    a("s_barrier")
    a(f"ds_read_b128 v[{E+8}:{E+11}], v7")
    a(f"ds_read_b128 v[{E+12}:{E+15}], v7 offset:16")
    a("s_waitcnt lgkmcnt(0)")
    a(f"v_max3_f32 v20, v{E+8}, v{E+9}, v{E+10}")
    a(f"v_max3_f32 v21, v{E+11}, v{E+12}, v{E+13}")
    a(f"v_max3_f32 v20, v20, v{E+14}, v{E+15}")
    a("v_max_f32 v20, v20, v21")
    for i in range(8): a(f"v_sub_f32 v{E+i}, v{E+i}, v20")
    for i in range(8): a(f"v_mul_f32 v{E+i}, s65, v{E+i}")
    for i in range(8): a(f"v_exp_f32 v{E+i}, v{E+i}")
    a(f"v_add_f32 v20, v{E}, v{E+1}")
    a(f"v_add_f32 v21, v{E+2}, v{E+3}")
    a(f"v_add_f32 v22, v{E+4}, v{E+5}")
    a(f"v_add_f32 v16, v{E+6}, v{E+7}")
    a("v_add_f32 v20, v20, v21")
    a("v_add_f32 v22, v22, v16")
    a("v_add_f32 v20, v20, v22")
    wave_reduce("v_add_f32", "v20", "v21")
    a("s_mov_b64 exec, 1")
    a("ds_write_b32 v6, v20 offset:32")
    a("s_mov_b64 exec, -1")
    a("s_waitcnt lgkmcnt(0)")
    a("s_barrier")
    a(f"ds_read_b128 v[{E+8}:{E+11}], v7 offset:32")
    a(f"ds_read_b128 v[{E+12}:{E+15}], v7 offset:48")
    a("s_waitcnt lgkmcnt(0)")
    sumr = lambda i: f"v{E+8+i}"
    a(f"v_add_f32 {sumr(0)}, {sumr(0)}, {sumr(1)}")
    a(f"v_add_f32 {sumr(2)}, {sumr(2)}, {sumr(3)}")
    a(f"v_add_f32 {sumr(4)}, {sumr(4)}, {sumr(5)}")
    a(f"v_add_f32 {sumr(6)}, {sumr(6)}, {sumr(7)}")
    a(f"v_add_f32 {sumr(0)}, {sumr(0)}, {sumr(2)}")
    a(f"v_add_f32 {sumr(4)}, {sumr(4)}, {sumr(6)}")
    a(f"v_add_f32 v20, {sumr(0)}, {sumr(4)}")
    a("v_rcp_f32 v20, v20")
    for i in range(8): a(f"v_mul_f32 v{E+i}, v{E+i}, v20")
    for i in range(8): a(f"v_cvt_pk_bf16_f32 v{E+i}, v{E+i}, v{E+i}")
    a(f"ds_write_b128 v3, v[{E}:{E+3}]")
    a(f"ds_write_b128 v3, v[{E+4}:{E+7}] offset:16")
    a("v_lshrrev_b32 v6, 3, v4")
    a("v_lshl_add_u32 v6, v5, 1, v6")
    a("v_lshlrev_b32 v6, 10, v6")
    a("v_and_b32 v7, 7, v4")
    a("v_lshl_add_u32 v25, v7, 4, v6")
    a("s_lshl_b32 s62, s4, 17")
    a("s_lshl_b32 s6, s3, 7")
    a("s_add_u32 s62, s62, s6")
    a("s_lshl_b32 s63, s3, 14")
    a(f"s_add_u32 s12, s63, {WO_BASE + 16*1024}")
    for r in range(4): a(f"v_mov_b32 v{36+r}, 0")
    a("s_waitcnt lgkmcnt(0)")
    a("ds_read_b128 v[28:31], v24")
    stamp()

    def v_step(n, nxt, tile_in_body, prefetch_p=True):
        t = n & 3
        r = RING + 4 * (n % D)
        if t == 0: a("s_waitcnt lgkmcnt(0)")
        for k in range(4): a(f"v_and_b32 v{32+k}, v{28+t}, v{8+k}")
        if t == 3 and prefetch_p: a(f"ds_read_b128 v[28:31], v24 offset:{(tile_in_body+1)*64}")
        a(f"s_waitcnt vmcnt({D-1})" if nxt else f"s_waitcnt vmcnt({min(D-1, NL-1-n)})")
        a(f"v_mfma_f32_16x16x32_bf16 v[36:39], v[32:35], v[{r}:{r+3}], v[36:39]")
        if nxt: nxt()
    lab = [0]
    def wo_dma():
        lab[0] += 1
        L = f"L_nodma{lab[0]}"
        a("s_cmp_ge_u32 s63, s12")
        a(f"s_cbranch_scc1 {L}")
        a("s_mov_b32 m0, s63")
        a("s_add_u32 s63, s63, 0x400")
        a(f"buffer_load_dwordx4 v25, s[56:59], s62 offen{pol(wo_pol)} lds")
        a("s_add_u32 s62, s62, 0x2000")
        a(f"{L}:")
    a(f"s_mov_b32 s61, {nfull}")
    a("L_vloop:")
    for n in range(body):
        v_step(n, (lambda n=n: issue(VS, n + D)), n >> 2)
        if (n & 3) == 3: wo_dma()
    a(f"v_add_u32 v24, {64 * (body // 4)}, v24")
    a("s_sub_u32 s61, s61, 1")
    a("s_cmp_lg_u32 s61, 0")
    a("s_cbranch_scc1 L_vloop")
    a("s_lshl_b32 s63, s3, 14")
    a(f"v_add_u32 v25, s63, v2")
    for n in range(n0, NL):
        if n == NL - 4:
            a("s_waitcnt lgkmcnt(0)")
            for k in range(4): a(f"v_mov_b32 v{16+k}, v{28+k}")
            for t in range(16):
                if t == 15: a("s_waitcnt lgkmcnt(14)")
                a(f"ds_read_b128 v[{WREG+4*t}:{WREG+4*t+3}], v25 offset:{WO_BASE + t*1024}")
        nxt = (lambda n=n: issue(VS, n + D)) if n + D < NL else None
        if n >= NL - 4:
            t = n & 3; r = RING + 4 * (n % D)
            for k in range(4): a(f"v_and_b32 v{32+k}, v{16+t}, v{8+k}")
            a(f"s_waitcnt vmcnt({min(D-1, NL-1-n)})")
            a(f"v_mfma_f32_16x16x32_bf16 v[36:39], v[32:35], v[{r}:{r+3}], v[36:39]")
            if nxt: nxt()
        else:
            v_step(n, nxt, (n - n0) >> 2)
    stamp()

    a("ds_write_b128 v26, v[36:39]")
    a("v_and_b32 v3, 3, v1")
    a("v_lshrrev_b32 v6, 2, v1")
    a("v_lshl_add_u32 v3, v3, 4, v6")
    a("v_lshl_add_u32 v3, v3, 2, s10")
    a("v_lshrrev_b32 v6, 3, v4")
    a("v_lshlrev_b32 v6, 2, v6")
    a("v_add_u32 v6, v6, v5")
    a("v_lshl_add_u32 v6, v6, 6, s10")
    a("s_waitcnt lgkmcnt(0)")
    a("s_barrier")
    for w in range(8): a(f"ds_read_b64 v[{RING+2*w}:{RING+2*w+1}], v0 offset:{w*512}")
    a("s_waitcnt lgkmcnt(0)")
    sum8(RING, "v16", "v17")
    a("v_cvt_pk_bf16_f32 v16, v16, v16")
    a("v_cvt_pk_bf16_f32 v17, v17, v17")
    a("ds_write_b32 v3, v16")
    a("ds_write_b32 v3, v17 offset:256")
    a("s_waitcnt lgkmcnt(0)")
    for k in range(4): a(f"ds_read_b128 v[{RING+4*k}:{RING+4*k+3}], v6 offset:{16*k}")
    a("s_lshl_b32 s6, s2, 11")
    a("s_lshl_b32 s7, s3, 8")
    a("s_add_u32 s6, s6, s7")
    a("s_add_u32 s14, s42, s6")
    a("s_addc_u32 s15, s43, 0")
    for t in range(16):
        if t % 4 == 0: a(f"s_waitcnt lgkmcnt({3 - t // 4})")
        A = 32 if t % 2 == 0 else 16
        for k in range(4): a(f"v_and_b32 v{A+k}, v{RING+t}, v{8+k}")
        c = "0" if t == 0 else "v[36:39]"
        a(f"v_mfma_f32_16x16x32_bf16 v[36:39], v[{A}:{A+3}], v[{WREG+4*t}:{WREG+4*t+3}], {c}")
    for r in range(4): a(f"v_mov_b32_dpp v{16+r}, v{36+r} row_ror:8 row_mask:0xf bank_mask:0xf")
    for r in range(4): a(f"v_permlane32_swap_b32 v{16+r}, v{20+r}")
    for r in range(4): a(f"v_add_f32 v{36+r}, v{36+r}, v{20+r}")
    a("s_mov_b32 exec_lo, 0x00ff00ff")
    a("s_mov_b32 exec_hi, 0")
    a("global_store_dwordx4 v27, v[36:39], s[14:15] sc1")
    a("s_mov_b64 exec, -1")
    a("s_waitcnt vmcnt(0)")
    a("s_barrier")
    stamp()
    a("s_cmp_lg_u32 s3, 0")
    a("s_cbranch_scc1 L_arrived")
    a("s_lshl_b32 s6, s5, 5")
    a("v_mov_b32 v3, s6")
    a("v_mov_b32 v6, 1")
    a(f"v_mov_b32 v7, {ML_BASE + 64}")
    a("s_mov_b64 exec, 1")
    a("global_atomic_add v6, v3, v6, s[40:41] sc0")
    a("s_waitcnt vmcnt(0)")
    a("ds_write_b32 v7, v6")
    a("s_mov_b64 exec, -1")
    a("s_waitcnt lgkmcnt(0)")
    a("L_arrived:")
    a("s_barrier")
    a(f"v_mov_b32 v7, {ML_BASE + 64}")
    a("ds_read_b32 v6, v7")
    a("s_waitcnt lgkmcnt(0)")
    a("v_readfirstlane_b32 s6, v6")
    a("s_cmp_lg_u32 s6, 31")
    a("s_cbranch_scc1 L_fin")

    a("s_lshl_b32 s6, s5, 16")
    a("s_add_u32 s44, s42, s6")
    a("s_addc_u32 s45, s43, 0")
    a("s_mov_b32 s46, 0x10000")
    a("v_lshlrev_b32 v3, 14, v5")
    a("v_lshl_add_u32 v3, v4, 4, v3")
    a("s_lshl_b32 s7, s3, 8")
    a("v_add_u32 v3, s7, v3")
    for k in range(8):
        if k % 2 == 0: a(f"s_mov_b32 s8, {(k // 2) * 4096}")
        a(f"buffer_load_dwordx4 v[{RING+4*k}:{RING+4*k+3}], v3, s[44:47], s8 offen offset:{(k % 2) * 2048} sc1")
    a("s_lshl_b32 s6, s5, 11")
    a("s_add_u32 s6, s6, s7")
    a(f"s_add_u32 s6, s6, {WS_T2}")
    a("s_add_u32 s14, s42, s6")
    a("s_addc_u32 s15, s43, 0")
    a("v_lshlrev_b32 v6, 4, v4")
    a("global_load_dwordx4 v[72:75], v6, s[14:15] sc1")
    a("s_lshl_b32 s6, s2, 2")
    a(f"s_add_u32 s6, s6, {WS_G}")
    a("s_add_u32 s14, s42, s6")
    a("s_addc_u32 s15, s43, 0")
    a("v_mov_b32 v7, 0")
    a("global_load_dword v76, v7, s[14:15] sc1")
    a("s_lshl_b32 s6, s5, 10")
    a("s_lshl_b32 s7, s3, 7")
    a("s_add_u32 s6, s6, s7")
    a("s_add_u32 s14, s38, s6")
    a("s_addc_u32 s15, s39, 0")
    a("v_lshlrev_b32 v6, 3, v4")
    a("s_waitcnt vmcnt(2)")
    for r in range(4):
        q = lambda k: f"v{RING+4*k+r}"
        a(f"v_add_f32 {q(0)}, {q(0)}, {q(1)}")
        a(f"v_add_f32 {q(2)}, {q(2)}, {q(3)}")
        a(f"v_add_f32 {q(4)}, {q(4)}, {q(5)}")
        a(f"v_add_f32 {q(6)}, {q(6)}, {q(7)}")
        a(f"v_add_f32 {q(0)}, {q(0)}, {q(2)}")
        a(f"v_add_f32 {q(4)}, {q(4)}, {q(6)}")
        a(f"v_add_f32 v{16+r}, {q(0)}, {q(4)}")
    for r in range(4): a(f"v_mov_b32 v{20+r}, v{16+r}")
    for r in range(4): a(f"v_permlane16_swap_b32 v{16+r}, v{20+r}")
    for r in range(4): a(f"v_add_f32 v{16+r}, v{16+r}, v{20+r}")
    for r in range(4): a(f"v_mov_b32 v{20+r}, v{16+r}")
    for r in range(4): a(f"v_permlane32_swap_b32 v{16+r}, v{20+r}")
    for r in range(4): a(f"v_add_f32 v{16+r}, v{16+r}, v{20+r}")
    round_pair("v16", "v17", "v20", "s66")
    round_pair("v18", "v19", "v21", "s66")
    a("s_waitcnt vmcnt(0)")
    for r in range(4): a(f"v_mul_f32 v{16+r}, v76, v{16+r}")
    round_pair("v16", "v17", "v20", "s66")
    round_pair("v18", "v19", "v21", "s66")
    for r in range(4): a(f"v_add_f32 v{16+r}, v{16+r}, v{72+r}")
    a("v_cvt_pk_bf16_f32 v20, v16, v17")
    a("v_cvt_pk_bf16_f32 v21, v18, v19")
    a("s_mov_b64 exec, 0xffff")
    a("global_store_dwordx2 v6, v[20:21], s[14:15]")
    a("L_fin:")
    if stamps:
        stamp()
        emit_stamps(a, nstamp[0])
    a("s_endpgm")

    a("L_helper:")
    W1, B1, W2 = 40, 72, 104
    RAW = 120
    a("s_mov_b32 s46, 3584"); a("s_mov_b32 s47, 0x20000")
    a("s_mov_b32 s50, 3584"); a("s_mov_b32 s51, 0x20000")
    a("s_mov_b32 s54, 3584"); a("s_mov_b32 s55, 0x20000")
    a("s_lshl_b32 s6, s5, 10")
    a("s_waitcnt lgkmcnt(0)")
    a("s_add_u32 s16, s16, s6"); a("s_addc_u32 s17, s17, 0")
    a("s_mov_b32 s44, s28"); a("s_mov_b32 s45, s29")
    a("s_mov_b32 s48, s30"); a("s_mov_b32 s49, s31")
    a("s_mov_b32 s52, s32"); a("s_mov_b32 s53, s33")
    a("v_mov_b32 v7, 0")
    a("global_load_dwordx4 v[12:15], v2, s[16:17]")
    a("global_load_dwordx4 v[16:19], v2, s[36:37]")
    a("global_load_ushort v20, v7, s[34:35]")
    for j in range(4): a(f"buffer_load_dwordx4 v[{RAW+4*j}:{RAW+4*j+3}], v2, s[44:47], 0 offen offset:{j*1024}")
    for j in range(4): a(f"buffer_load_dwordx4 v[{RAW+16+4*j}:{RAW+16+4*j+3}], v2, s[48:51], 0 offen offset:{j*1024}")
    for j in range(4): a(f"buffer_load_dwordx4 v[{W2+4*j}:{W2+4*j+3}], v2, s[52:55], 0 offen offset:{j*1024}")
    a("s_barrier")
    a("s_waitcnt vmcnt(12)")
    X = W1; G = W1 + 8
    for p in range(4):
        a(f"v_lshlrev_b32 v{X+2*p}, 16, v{12+p}"); a(f"v_and_b32 v{X+2*p+1}, s66, v{12+p}")
        a(f"v_lshlrev_b32 v{G+2*p}, 16, v{16+p}"); a(f"v_and_b32 v{G+2*p+1}, s66, v{16+p}")
    for i in range(8): a(f"v_mul_f32 v{X+i}, v{X+i}, v{G+i}")
    for p in range(4): round_pair(f"v{X+2*p}", f"v{X+2*p+1}", "v3", "s66")
    for i in range(1, 8): a(f"v_add_f32 v{X}, v{X}, v{X+i}")
    wave_reduce("v_add_f32", f"v{X}", "v3")
    round_one(f"v{X}", "v3")
    a(f"v_mul_f32 v21, s65, v{X}")
    a("v_exp_f32 v21, -v21")
    a("v_add_f32 v21, 1.0, v21")
    a("v_rcp_f32 v21, v21")
    round_one("v21", "v3")
    a("v_sub_f32 v22, 1.0, v21")
    round_one("v22", "v3")
    for p in range(4):
        a(f"v_lshlrev_b32 v{X+2*p}, 16, v{12+p}"); a(f"v_and_b32 v{X+2*p+1}, s66, v{12+p}")
    a(f"v_add_f32 v23, v{X}, v{X+1}")
    for i in range(2, 8): a(f"v_add_f32 v23, v23, v{X+i}")
    wave_reduce("v_add_f32", "v23", "v3")
    a(f"s_mov_b32 s6, {f32bits(1/512):#x}")
    a("v_mul_f32 v23, s6, v23")
    for i in range(8): a(f"v_sub_f32 v{G+i}, v{X+i}, v23")
    a(f"v_mul_f32 v24, v{G}, v{G}")
    for i in range(1, 8): a(f"v_fmac_f32 v24, v{G+i}, v{G+i}")
    wave_reduce("v_add_f32", "v24", "v3")
    a("v_mul_f32 v24, s6, v24")
    round_one("v24", "v3")
    round_one("v23", "v3")
    a(f"v_add_f32 v24, {f32bits(1e-5):#x}, v24")
    round_one("v24", "v3")
    a("v_sqrt_f32 v24, v24")
    round_one("v24", "v3")
    a("v_rcp_f32 v24, v24")
    for i in range(8): a(f"v_sub_f32 v{X+i}, v{X+i}, v23")
    for p in range(4): round_pair(f"v{X+2*p}", f"v{X+2*p+1}", "v3", "s66")
    for i in range(8): a(f"v_mul_f32 v{X+i}, v{X+i}, v24")
    for p in range(4): round_pair(f"v{X+2*p}", f"v{X+2*p+1}", "v3", "s66")
    a("s_lshl_b32 s6, s4, 1")
    a("s_add_u32 s7, s6, 1")
    for i in range(16): a(f"v_readlane_b32 s{64+16+i}, v{X+(i&7)}, s{6 + (i >> 3)}")
    HB = 80
    a("v_lshlrev_b32 v20, 16, v20")
    a("s_waitcnt vmcnt(0)")
    for j in range(16):
        a(f"v_lshlrev_b32 v{W1+2*j}, 16, v{RAW+j}");    a(f"v_and_b32 v{W1+2*j+1}, s66, v{RAW+j}")
        a(f"v_lshlrev_b32 v{B1+2*j}, 16, v{RAW+16+j}"); a(f"v_and_b32 v{B1+2*j+1}, s66, v{RAW+16+j}")
    c0 = -2.0 * math.sqrt(2.0 / math.pi) * math.log2(math.e)
    c1 = c0 * 0.044715
    a(f"v_mov_b32 v8, {f32bits(c1):#x}"); a("v_mov_b32 v9, v8")
    a(f"v_mov_b32 v10, {f32bits(c0):#x}"); a("v_mov_b32 v11, v10")
    a("v_mov_b32 v12, 1.0"); a("v_mov_b32 v13, 1.0")
    a("v_mov_b32 v25, 0")
    a("s_mov_b32 s61, 0")
    a("L_hloop:")
    a("s_mov_b32 m0, s61")
    a(f"s_movrels_b32 s6, s{HB}")
    a("v_mov_b32 v14, s6"); a("v_mov_b32 v15, s6")
    a("v_mov_b32 v26, 0")
    for p in range(16):
        T0, T1, Q0, Q1, U = (16, 17, 18, 19, 24) if p % 2 == 0 else (28, 29, 30, 31, 27)
        T = f"v[{T0}:{T1}]"; Q = f"v[{Q0}:{Q1}]"
        a(f"v_pk_mul_f32 {T}, v[{W1+2*p}:{W1+2*p+1}], v[14:15]")
        round_pair(f"v{T0}", f"v{T1}", f"v{U}", "s66")
        a(f"v_pk_add_f32 {T}, {T}, v[{B1+2*p}:{B1+2*p+1}]")
        round_pair(f"v{T0}", f"v{T1}", f"v{U}", "s66")
        a(f"v_pk_mul_f32 {Q}, {T}, {T}")
        a(f"v_pk_fma_f32 {Q}, {Q}, v[8:9], v[10:11]")
        a(f"v_pk_mul_f32 {Q}, {Q}, {T}")
        a(f"v_exp_f32 v{Q0}, v{Q0}"); a(f"v_exp_f32 v{Q1}, v{Q1}")
        a(f"v_pk_add_f32 {Q}, {Q}, v[12:13]")
        a(f"v_rcp_f32 v{Q0}, v{Q0}"); a(f"v_rcp_f32 v{Q1}, v{Q1}")
        a(f"v_pk_mul_f32 {Q}, {Q}, {T}")
        a(f"v_cvt_pk_bf16_f32 v{U}, v{Q0}, v{Q1}")
        a(f"v_dot2c_f32_bf16 v26, v{U}, v{W2+p}")
    wave_reduce("v_add_f32", "v26", "v3")
    a("v_cmp_eq_u32 vcc, s61, v1")
    a("v_cndmask_b32 v25, v25, v26, vcc")
    a("s_add_u32 s61, s61, 1")
    a("s_cmp_lt_u32 s61, 16")
    a("s_cbranch_scc1 L_hloop")
    round_one("v25", "v3")
    a("v_add_f32 v25, v25, v20")
    round_one("v25", "v3")
    a("v_mul_f32 v25, v22, v25")
    round_one("v25", "v3")
    a("s_lshl_b32 s6, s5, 11")
    a("s_lshl_b32 s7, s4, 6")
    a("s_add_u32 s6, s6, s7")
    a(f"s_add_u32 s6, s6, {WS_T2}")
    a("s_add_u32 s14, s42, s6")
    a("s_addc_u32 s15, s43, 0")
    a("s_lshl_b32 s6, s2, 2")
    a(f"s_add_u32 s6, s6, {WS_G}")
    a("s_add_u32 s12, s42, s6")
    a("s_addc_u32 s13, s43, 0")
    a("v_lshlrev_b32 v3, 2, v1")
    a("s_mov_b64 exec, 0xffff")
    a("global_store_dword v3, v25, s[14:15] sc1")
    a("s_mov_b64 exec, 1")
    a("global_store_dword v3, v21, s[12:13] sc1")
    a("s_mov_b64 exec, -1")
    a("s_waitcnt vmcnt(0)")
    a("s_barrier")
    a("L_end:")
    a("s_endpgm")

    body_txt, nins = a.finalize()
    NV = 168
    out = HEADER
    out += f"; @launch grid=(256,1,1) block=(576,1,1) lds={LDS_BYTES}\n"
    out += '.amdgcn_target "amdgcn-amd-amdhsa--gfx950"\n.text\n'
    out += f".globl {KNAME}\n.p2align 8\n.type {KNAME},@function\n"
    out += body_txt
    out += '.section .rodata,"a"\n.p2align 6\n'
    out += f".amdhsa_kernel {KNAME}\n  .amdhsa_next_free_vgpr {NV}\n  .amdhsa_next_free_sgpr 102\n  .amdhsa_accum_offset {NV}\n"
    out += "  .amdhsa_group_segment_fixed_size 0\n  .amdhsa_kernarg_size 112\n  .amdhsa_user_sgpr_count 2\n"
    out += "  .amdhsa_user_sgpr_kernarg_segment_ptr 1\n  .amdhsa_system_sgpr_workgroup_id_x 1\n"
    out += "  .amdhsa_float_denorm_mode_32 3\n"
    out += ".end_amdhsa_kernel\n"
    return out

def emit_stamps(a, n):
    a("s_waitcnt lgkmcnt(0) vmcnt(0)")
    a("s_mov_b64 exec, 1")
    a("s_mul_i32 s6, s2, 9"); a("s_add_u32 s6, s6, s3"); a("s_lshl_b32 s6, s6, 6")
    a(f"s_add_u32 s6, s6, {WS_STAMP}")
    a("s_add_u32 s14, s42, s6"); a("s_addc_u32 s15, s43, 0")
    a("v_mov_b32 v3, 0")
    for i in range(n):
        a(f"v_mov_b32 v6, s{80+2*i}")
        a(f"global_store_dword v3, v6, s[14:15] offset:{4*i}")
    a("s_getreg_b32 s6, hwreg(HW_REG_XCC_ID)")
    a("v_mov_b32 v6, s6")
    a("global_store_dword v3, v6, s[14:15] offset:60")

if __name__ == "__main__":
    import build
    kw = eval("dict(" + (sys.argv[2] if len(sys.argv) > 2 else "") + ")")
    txt = gen(**kw)
    open(sys.argv[1], "w").write(txt)
    build.build(sys.argv[1])
```

```python
import re, sys
from asmlib import Ins

def check(path, verbose=True):
    lines = [l.strip() for l in open(path).read().split("\n")]
    start = next(i for i, l in enumerate(lines) if l.endswith("_kernel:"))
    end = next(i for i, l in enumerate(lines) if l.startswith(".section"))
    ins = [Ins(l) for l in lines[start + 1:end] if l and not l.startswith(";")]
    labels = {x.label: i for i, x in enumerate(ins) if x.label}
    problems = {}
    seen = set()
    stack = [(0, (), ())]
    steps = 0
    while stack:
        pc, vm, lg = stack.pop()
        while True:
            steps += 1
            if steps > 3_000_000: raise SystemExit("state explosion")
            if pc >= len(ins): break
            x = ins[pc]
            if x.label is not None or not x.op:
                if x.label is not None:
                    key = (pc, vm, lg)
                    if key in seen: break
                    seen.add(key)
                pc += 1; continue
            op = x.op
            if op == "s_waitcnt":
                t = x.text
                m = re.search(r"vmcnt\((\d+)\)", t)
                if m:
                    n = int(m.group(1))
                    if len(vm) > n: vm = vm[len(vm) - n:] if n else ()
                m = re.search(r"lgkmcnt\((\d+)\)", t)
                if m:
                    n = int(m.group(1))
                    if n == 0: lg = ()
                    elif not any(k == "s" for k, _ in lg):
                        if len(lg) > n: lg = lg[len(lg) - n:]
                pc += 1; continue
            touched = (x.src | x.dst)
            pend = set()
            for d in vm: pend |= d
            for _, d in lg: pend |= d
            is_load = (x.vmem and x.dst) or (x.ds and x.dst) or (x.salu and x.base.startswith(("s_load", "s_mem")))
            hit_src = x.src & pend
            hit_dst = x.dst & pend
            if hit_src or hit_dst:
                problems.setdefault(pc, (x.text, sorted(hit_src | hit_dst)))
            if x.ds and x.dst and x.ops[1] == "v25" and any(("lds", 0) in d for d in vm):
                problems.setdefault(pc, (x.text + "  ; LDS-DMA still in flight", []))
            if x.vmem and op not in ("buffer_wbl2", "buffer_inv"):
                d = frozenset(r for r in x.dst if r[0] in "va")
                if getattr(x, "ldsdma", False): d = frozenset([("lds", 0)])
                vm = vm + (d,)
                if len(vm) > 63: problems.setdefault(pc, (x.text + "  ; more than 63 vector-memory operations outstanding", []))
            elif x.ds:
                lg = lg + (("d", frozenset(x.dst)),)
                while len(lg) > 16 and not lg[0][1]: lg = lg[1:]
            elif x.salu and (x.base.startswith("s_load") or x.base in ("s_memtime", "s_memrealtime") or x.base.startswith("s_atomic")):
                lg = lg + (("s", frozenset(x.dst)),)
            if op == "s_endpgm": break
            if op == "s_branch":
                pc = labels[x.ops[0]]; continue
            if op.startswith("s_cbranch"):
                stack.append((labels[x.ops[0]], vm, lg))
            pc += 1
    for pc, (t, regs) in sorted(problems.items()):
        print(f"{path}: [{pc}] {t}   pending: {regs}")
    if verbose: print(f"{path}: {len(problems)} wait problem(s), {len(seen)} states")
    return len(problems)

if __name__ == "__main__":
    bad = sum(check(p) for p in sys.argv[1:])
    sys.exit(1 if bad else 0)
```

```python
import sys, json, importlib
import build
mod = sys.argv[1]
G = importlib.import_module(mod)
specs = []
for item in sys.argv[2:]:
    name, _, kw = item.partition(":")
    txt = G.gen(**eval("dict(" + kw + ")"))
    open(name + ".s", "w").write(txt)
    build.build("./" + name + ".s", quiet=True)
    import waitcheck
    if waitcheck.check(name + ".s", verbose=False): raise SystemExit("wait check failed: " + name)
    l = [x for x in txt.split("\n") if x.startswith("; @launch")]
    parts = []
    for x in l:
        import re
        m = re.search(r"(?:kernel=(\S+) )?grid=\((\d+),1,1\) block=\((\d+),1,1\) lds=(\d+)", x)
        parts.append(f"{m.group(1) or G.KNAME},{m.group(2)},{m.group(3)},{m.group(4)}")
    specs.append(name + ".co," + ";".join(parts))
open("specs.txt", "w").write("\n".join(specs) + "\n")
print(json.dumps(["work/bench_host", "work/runk.sh", "work/specs.txt", "work/kstamps.py"] + ["work/" + s.split(",")[0] for s in specs]))
```
